```python
import torch

def _softmax(x, axis=-1):
    return torch.softmax(x, dim=axis)
def _gelu(x):
    return torch.nn.functional.gelu(x, approximate="tanh")
def _silu(x):
    return torch.nn.functional.silu(x)
def _sigmoid(x):
    return torch.sigmoid(x)
def _layernorm(x, axis=-1, eps=1e-5):
    m = x.mean(dim=axis, keepdim=True)
    v = x.var(dim=axis, keepdim=True, unbiased=False)
    return (x - m) / torch.sqrt(v + eps)
def _scatter_add(tgt, idx, src, axis=0):
    return tgt.clone().index_add_(axis, idx, src)
def _segment_sum(src, seg, n):
    out = torch.zeros((n,) + src.shape[1:], dtype=src.dtype)
    return out.index_add_(0, seg, src)
def _pad(x, pw):
    flat = tuple(v for pair in reversed(pw) for v in pair)
    return torch.nn.functional.pad(x, flat)

kernel_name = 'concat_heads__linear_kernel_hedgehog__ssm_conv_s4d__prompt'

def setup_inputs():

    _w = (lambda a: (lambda t: t.to(torch.bfloat16) if t.is_floating_point() else t)(torch.as_tensor(a)))
    def _A_setup():
        B, S, D, H = 1, 2048, 512, 32
        Dh = D // H
        return {
            "x": _w((lambda *s: torch.randn(*s, dtype=torch.bfloat16) * 0.4)(B, S, D)),
            "wqkv": _w((lambda *s: torch.randn(*s, dtype=torch.bfloat16) * 0.4)(D, 3 * D)),
            "w_phi": _w((lambda *s: torch.randn(*s, dtype=torch.bfloat16) * 0.4)(H, Dh, Dh) * (Dh ** -0.5)),
            "wo": _w((lambda *s: torch.randn(*s, dtype=torch.bfloat16) * 0.05)(D, D)),
        }
    _A_in = _A_setup()

    def _B_setup():
        Bsz, L, D, N = 1, 2048, 512, 128
        return {
            "u": _w((lambda *s: torch.randn(*s, dtype=torch.bfloat16) * 0.05)(Bsz, L, D)),
            "log_A_real": _w((lambda *s: torch.randn(*s, dtype=torch.bfloat16) * 3.2)(D, N) * 0.5),
            "A_imag": _w((lambda *s: torch.randn(*s, dtype=torch.bfloat16) * 0.2)(D, N) * 3.14),
            "C_real": _w((lambda *s: torch.randn(*s, dtype=torch.bfloat16) * 3.2)(D, N) / N ** 0.5),
            "C_imag": _w((lambda *s: torch.randn(*s, dtype=torch.bfloat16) * 3.2)(D, N) / N ** 0.5),
            "log_dt": _w((lambda *s: torch.randn(*s, dtype=torch.bfloat16) * 0.2)(D) * 0.5 - 4.0),
            "D_skip": _w((lambda *s: torch.randn(*s, dtype=torch.bfloat16) * 0.4)(D)),
        }
    _B_in = _B_setup()

    return {
        "A_x": _A_in["x"],
        "A_wqkv": _A_in["wqkv"],
        "A_w_phi": _A_in["w_phi"],
        "A_wo": _A_in["wo"],
        "B_u": _B_in["u"],
        "B_log_A_real": _B_in["log_A_real"],
        "B_A_imag": _B_in["A_imag"],
        "B_C_real": _B_in["C_real"],
        "B_C_imag": _B_in["C_imag"],
        "B_log_dt": _B_in["log_dt"],
        "B_D_skip": _B_in["D_skip"],
    }

def reference(A_x, A_wqkv, A_w_phi, A_wo, B_u, B_log_A_real, B_A_imag, B_C_real, B_C_imag, B_log_dt, B_D_skip):
    def _A_ref(x, wqkv, w_phi, wo):
        B, S, D = x.shape
        H = 32; Dh = D // H
        qkv = (lambda x, *d: x.permute(*d))((x @ wqkv).reshape(B, S, 3, H, Dh), 2, 0, 3, 1, 4)
        q, k, v = qkv[0], qkv[1], qkv[2]
        pq = torch.einsum("bhsd,hdf->bhsf", q, w_phi)
        pk = torch.einsum("bhsd,hdf->bhsf", k, w_phi)
        phi_q = torch.concatenate([_softmax(pq, axis=-1), _softmax(-pq, axis=-1)], axis=-1)
        phi_k = torch.concatenate([_softmax(pk, axis=-1), _softmax(-pk, axis=-1)], axis=-1)
        kv = torch.einsum("bhsf,bhsd->bhfd", phi_k, v)
        z  = torch.einsum("bhsf->bhf", phi_k)
        num = torch.einsum("bhqf,bhfd->bhqd", phi_q, kv)
        den = torch.einsum("bhqf,bhf->bhq", phi_q, z)[..., None] + 1e-6
        o = num / den
        return (lambda x, *d: x.permute(*d))(o, 0, 2, 1, 3).reshape(B, S, D) @ wo

    def _B_ref(u, log_A_real, A_imag, C_real, C_imag, log_dt, D_skip):
        L = u.shape[1]
        dt = torch.exp(log_dt)
        A = -torch.exp(log_A_real) + 1j * A_imag
        C = (C_real + 1j * C_imag) * dt[:, None]
        pos = (lambda x, dt: x.to(dt))(torch.arange(L), log_dt.dtype)
        P = torch.exp((A * dt[:, None])[:, :, None] * pos[None, None, :])
        K = 2.0 * torch.einsum("dn,dnl->dl", C, P).real
        L2 = 2 * L
        u_t = (lambda x, *d: x.permute(*d))(u, 0, 2, 1)
        Kf = (lambda x, *a, **k: torch.fft.rfft(x.float(), *a, **k))(K, L2)
        Uf = (lambda x, *a, **k: torch.fft.rfft(x.float(), *a, **k))(u_t, L2)
        y = (lambda x, *a, **k: torch.fft.irfft(x, *a, **k).to(torch.bfloat16))(Uf * Kf[None, :, :], L2)[:, :, :L]
        y = (lambda x, *d: x.permute(*d))(y, 0, 2, 1)
        return y + u * D_skip[None, None, :]

    a = _A_ref(A_x, A_wqkv, A_w_phi, A_wo)
    b = _B_ref(B_u, B_log_A_real, B_A_imag, B_C_real, B_C_imag, B_log_dt, B_D_skip)
    return torch.concatenate([a, b], axis=-1)
```

```python
NAME = "concat_heads__linear_kernel_hedgehog__ssm_conv_s4d__prompt"
def wrap(body, grid, block, lds, vgpr=256, sgpr=102, accum=None):
    hdr = open("cdna_kernels/%s.s.ref" % NAME).read().split("; Override launch")[0]
    accum = accum or min(256, (vgpr + 3)//4*4)
    return hdr + f"""; @launch grid=({grid},1,1) block=({block},1,1) lds={lds}
.amdgcn_target "amdgcn-amd-amdhsa--gfx950"
.text
.globl {NAME}_kernel
.p2align 8
.type {NAME}_kernel,@function
{NAME}_kernel:
{body}
s_endpgm
.section .rodata,"a"
.p2align 6
.amdhsa_kernel {NAME}_kernel
  .amdhsa_next_free_vgpr {vgpr}
  .amdhsa_next_free_sgpr {sgpr}
  .amdhsa_accum_offset {accum}
  .amdhsa_group_segment_fixed_size 0
  .amdhsa_kernarg_size 112
  .amdhsa_user_sgpr_count 2
  .amdhsa_user_sgpr_kernarg_segment_ptr 1
  .amdhsa_system_sgpr_workgroup_id_x 1
.end_amdhsa_kernel
"""
```

```python
from asmlib import *
def stamp(i): return f"s_memrealtime s[{40+2*i}:{41+2*i}]\n"
PRO = stamp(0) + """
s_load_dwordx4 s[60:63], s[0:1], 0
s_load_dwordx2 s[4:5], s[0:1], 32
s_load_dwordx2 s[6:7], s[0:1], 88
s_load_dwordx2 s[8:9], s[0:1], 104
s_waitcnt lgkmcnt(0)
""" + stamp(1) + """
s_mov_b32 s12, s4
s_mov_b32 s13, s5
s_mov_b32 s14, 0x200000
s_mov_b32 s15, 0x20000
s_mov_b32 s16, s6
s_mov_b32 s17, s7
s_mov_b32 s18, 0x400000
s_mov_b32 s19, 0x20000
s_add_u32 s20, s8, 0x8000000
s_addc_u32 s21, s9, 0
s_mov_b32 s22, 0x100000
s_mov_b32 s23, 0x20000
s_mov_b32 s64, s60
s_mov_b32 s65, s61
s_mov_b32 s66, 0x200000
s_mov_b32 s67, 0x20000
s_mov_b32 s68, s62
s_mov_b32 s69, s63
s_mov_b32 s70, 0x180000
s_mov_b32 s71, 0x20000
"""
EPI = "s_waitcnt lgkmcnt(0)\nv_lshrrev_b32 v3, 6, v0\ns_lshl_b32 s27, s2, 3\nv_add_u32 v3, s27, v3\nv_lshlrev_b32 v3, 6, v3\n" + \
   "".join(f"v_mov_b32 v4, s{40+2*i}\nbuffer_store_dword v4, v3, s[20:23], 0 offen offset:{4*i}\ns_nop 1\n" for i in range(6)) + "s_waitcnt vmcnt(0)\n"
def gather(spread):
    b = PRO
    if spread: b += "s_lshl_b32 s25, s2, 2\n"
    else: b += "s_and_b32 s25, s2, 7\ns_lshr_b32 s26, s2, 3\ns_lshl_b32 s25, s25, 7\ns_lshl_b32 s26, s26, 2\ns_add_u32 s25, s25, s26\n"
    b += "v_lshlrev_b32 v1, 10, v0\nv_add_u32 v1, s25, v1\nv_lshlrev_b32 v2, 11, v0\nv_add_u32 v2, s25, v2\nv_add_u32 v2, 1024, v2\n"
    for i in range(8): b += f"s_mov_b32 s27, {i*256*1024}\nbuffer_load_dword v{10+i}, v1, s[12:15], s27 offen\n"
    b += stamp(2) + "s_waitcnt vmcnt(0)\n" + stamp(3)
    for i in range(8): b += f"s_mov_b32 s27, {i*256*2048}\nbuffer_store_dword v{10+i}, v2, s[16:19], s27 offen\n"
    b += stamp(4) + "s_waitcnt vmcnt(0)\n" + stamp(5)
    return b + EPI
def coal():
    b = PRO + "s_lshl_b32 s25, s2, 13\nv_lshlrev_b32 v1, 4, v0\nv_add_u32 v1, s25, v1\n"
    b += "s_mov_b32 s27, 4096\nbuffer_load_dwordx4 v[12:15], v1, s[12:15], 0 offen\nbuffer_load_dwordx4 v[16:19], v1, s[12:15], s27 offen\n"
    b += stamp(2) + "s_waitcnt vmcnt(0)\n" + stamp(3)
    b += "buffer_store_dwordx4 v[12:15], v1, s[16:19], 0 offen sc1\nbuffer_store_dwordx4 v[16:19], v1, s[16:19], s27 offen sc1\n"
    b += stamp(4) + "s_waitcnt vmcnt(0)\n" + stamp(5)
    return b + EPI
def a1(arr, xmode):
    b = PRO + "s_and_b32 s28, s2, 7\ns_lshr_b32 s29, s2, 3\n"
    if arr == 0:
        b += "s_and_b32 s25, s29, 15\ns_lshr_b32 s26, s29, 4\ns_lshl_b32 s28, s28, 1\ns_add_u32 s26, s26, s28\n"
    elif arr == 1:
        b += "s_and_b32 s26, s29, 15\ns_lshr_b32 s25, s29, 4\ns_lshl_b32 s28, s28, 1\ns_add_u32 s25, s25, s28\n"
    else:
        b += "s_and_b32 s26, s29, 7\ns_and_b32 s30, s28, 1\ns_lshl_b32 s30, s30, 3\ns_add_u32 s26, s26, s30\ns_lshr_b32 s25, s29, 3\ns_lshr_b32 s30, s28, 1\ns_lshl_b32 s30, s30, 2\ns_add_u32 s25, s25, s30\n"
    sh = 4 if xmode == 0 else 5
    b += f"v_and_b32 v1, 15, v0\nv_lshrrev_b32 v2, 6, v0\nv_lshlrev_b32 v2, 5, v2\nv_add_u32 v1, v1, v2\nv_lshlrev_b32 v1, 10, v1\nv_bfe_u32 v2, v0, 4, 2\nv_lshlrev_b32 v2, {sh}, v2\nv_add_u32 v1, v1, v2\ns_lshl_b32 s27, s25, 17\nv_add_u32 v1, s27, v1\nv_add_u32 v5, 0x4000, v1\n"
    b += "v_lshrrev_b32 v2, 2, v0\ns_movk_i32 s27, 3072\nv_mul_lo_u32 v2, v2, s27\nv_and_b32 v3, 3, v0\nv_lshlrev_b32 v3, 4, v3\nv_add_u32 v2, v2, v3\ns_lshl_b32 s27, s26, 6\nv_add_u32 v2, s27, v2\n"
    r = 16
    for kc in range(8):
        b += f"s_mov_b32 s27, {kc*64*3072}\n"
        for sec in range(3):
            b += f"buffer_load_dwordx4 v[{r}:{r+3}], v2, s[68:71], s27 offen offset:{sec*1024}\n"; r += 4
        for j in range(2):
            off = kc*128 + (j*64 if xmode == 0 else j*16)
            b += f"buffer_load_dwordx4 v[{r}:{r+3}], v1, s[64:67], 0 offen offset:{off}\n"; r += 4
            b += f"buffer_load_dwordx4 v[{r}:{r+3}], v5, s[64:67], 0 offen offset:{off}\n"; r += 4
    b += stamp(2) + "s_waitcnt vmcnt(49)\n" + stamp(3) + "s_waitcnt vmcnt(28)\n" + stamp(4) + "s_waitcnt vmcnt(0)\n" + stamp(5)
    return b + EPI
ks = {"g0": gather(0), "g1": gather(1), "coal": coal(), "a00": a1(0,0), "a10": a1(1,0), "a20": a1(2,0), "a21": a1(2,1)}
for n, b in ks.items(): open(f"mb2_{n}.s","w").write(wrap(b, 256, 256, 81920, vgpr=256))
```

```python
from asmlib import *
from mb2 import PRO, EPI, stamp
def sync(kind, sleep=True):
    b = PRO + """
s_load_dwordx2 s[72:73], s[0:1], 96
s_waitcnt lgkmcnt(0)
s_mov_b32 s74, 256
s_mov_b32 s75, 0x20000
s_mov_b32 s76, s8
s_mov_b32 s77, s9
s_mov_b32 s78, 0x1000000
s_mov_b32 s79, 0x20000
s_and_b32 s28, s2, 7
s_lshr_b32 s29, s2, 3
s_and_b32 s26, s29, 3
s_and_b32 s30, s28, 1
s_lshl_b32 s30, s30, 2
s_add_u32 s26, s26, s30
s_lshr_b32 s25, s29, 2
s_lshr_b32 s30, s28, 1
s_lshl_b32 s30, s30, 2
s_add_u32 s25, s25, s30
; align: two-level: wait until (t & 0x3ff) wraps past own start + 300
s_add_u32 s34, s40, 0x2ff
s_andn2_b32 s34, s34, 0x1ff
L_al:
s_memrealtime s[36:37]
s_waitcnt lgkmcnt(0)
s_sub_u32 s35, s36, s34
s_cmp_lt_i32 s35, 0
s_cbranch_scc1 L_al
""" + stamp(1) + """
s_lshl_b32 s27, s26, 4
s_add_u32 s27, s27, s25
s_lshl_b32 s31, s27, 12
v_lshlrev_b32 v1, 3, v0
v_mov_b32 v10, 1
v_mov_b32 v11, 1
buffer_store_dwordx2 v[10:11], v1, s[76:79], s31 offen sc1
s_waitcnt vmcnt(0)
s_barrier
""" + stamp(2) + """
v_cmp_gt_u32 vcc, 64, v0
s_cbranch_vccz L_skip
"""
    if kind == 0:
        b += """
v_mov_b32 v2, s27
v_mov_b32 v3, 1
s_mov_b64 exec, 1
buffer_store_byte v3, v2, s[72:75], 0 offen sc1
s_lshl_b32 s27, s26, 4
v_mov_b32 v2, s27
s_mov_b32 s38, 0x01010101
L_p:
buffer_load_dwordx4 v[4:7], v2, s[72:75], 0 offen sc1
s_waitcnt vmcnt(0)
v_and_b32 v4, v4, v5
v_and_b32 v6, v6, v7
v_and_b32 v4, v4, v6
v_cmp_eq_u32 vcc, s38, v4
s_cbranch_vccz L_p
s_mov_b64 exec, -1
"""
    else:
        b += """
s_lshl_b32 s27, s26, 8
s_add_u32 s27, s27, 0x800000
s_lshl_b32 s32, s25, 2
s_add_u32 s32, s32, s27
v_mov_b32 v2, s32
v_mov_b32 v3, 1
s_mov_b64 exec, 1
buffer_store_dword v3, v2, s[76:79], 0 offen sc1
s_mov_b64 exec, 0xffff
v_lshlrev_b32 v2, 2, v0
L_p:
buffer_load_dword v4, v2, s[76:79], s27 offen sc1
s_waitcnt vmcnt(0)
v_cmp_ne_u32 vcc, 1, v4
s_cbranch_vccnz L_p
s_mov_b64 exec, -1
"""
    b += "L_skip:\ns_barrier\n" + stamp(3) + "s_lshl_b32 s31, s26, 16\nv_lshlrev_b32 v1, 4, v0\n"
    for i in range(8): b += f"buffer_load_dwordx4 v[{16+4*i}:{19+4*i}], v1, s[76:79], s31 offen sc1\ns_add_u32 s31, s31, 8192\n"
    b += stamp(4) + "s_waitcnt vmcnt(0)\n" + stamp(5)
    return b + EPI
for n, b in {"dbg": sync(0), "ws": sync(1)}.items(): open(f"mb4_{n}.s","w").write(wrap(b, 128, 512, 81920, vgpr=128))
```
